```python
import torch

def _softmax(x, axis=-1):
    return torch.softmax(x, dim=axis)
def _gelu(x):
    return torch.nn.functional.gelu(x, approximate="tanh")
def _silu(x):
    return torch.nn.functional.silu(x)
def _sigmoid(x):
    return torch.sigmoid(x)
def _layernorm(x, axis=-1, eps=1e-5):
    m = x.mean(dim=axis, keepdim=True)
    v = x.var(dim=axis, keepdim=True, unbiased=False)
    return (x - m) / torch.sqrt(v + eps)
def _scatter_add(tgt, idx, src, axis=0):
    return tgt.clone().index_add_(axis, idx, src)
def _segment_sum(src, seg, n):
    out = torch.zeros((n,) + src.shape[1:], dtype=src.dtype)
    return out.index_add_(0, seg, src)
def _pad(x, pw):
    flat = tuple(v for pair in reversed(pw) for v in pair)
    return torch.nn.functional.pad(x, flat)

kernel_name = 'gated_mix__softmax_full_mha__dense_activation_relu__prompt'

def setup_inputs():

    _w = (lambda a: (lambda t: t.to(torch.bfloat16) if t.is_floating_point() else t)(torch.as_tensor(a)))
    def _A_setup():
        B, S, D = 1, 2048, 512
        return {
            "x": _w((lambda *s: torch.randn(*s, dtype=torch.bfloat16) * 0.05)(B, S, D)),
            "wqkv": _w((lambda *s: torch.randn(*s, dtype=torch.bfloat16) * 0.8)(D, 3 * D)),
            "wo": _w((lambda *s: torch.randn(*s, dtype=torch.bfloat16) * 0.1)(D, D)),
        }
    _A_in = _A_setup()

    def _B_setup():
        B, S, D, Dff = 1, 2048, 512, 1376
        return {
            "x": _w((lambda *s: torch.randn(*s, dtype=torch.bfloat16) * 0.05)(B, S, D)),
            "w1": _w((lambda *s: torch.randn(*s, dtype=torch.bfloat16) * 0.05)(D, Dff)),
            "w2": _w((lambda *s: torch.randn(*s, dtype=torch.bfloat16) * 0.05)(Dff, D)),
        }
    _B_in = _B_setup()

    return {
        "A_x": _A_in["x"],
        "A_wqkv": _A_in["wqkv"],
        "A_wo": _A_in["wo"],
        "B_x": _B_in["x"],
        "B_w1": _B_in["w1"],
        "B_w2": _B_in["w2"],
        "gate_w": _w((lambda *s: torch.randn(*s, dtype=torch.bfloat16) * 0.05)(512) * 16.0),
    }

def reference(A_x, A_wqkv, A_wo, B_x, B_w1, B_w2, gate_w):
    def _A_ref(x, wqkv, wo):
        B, S, D = x.shape
        H = 32; Dh = D // H
        qkv = (lambda x, *d: x.permute(*d))((x @ wqkv).reshape(B, S, 3, H, Dh), 2, 0, 3, 1, 4)
        q, k, v = qkv[0], qkv[1], qkv[2]
        scale = Dh ** -0.5
        scores = torch.einsum("bhqd,bhkd->bhqk", q, k) * scale
        p = _softmax(scores, axis=-1)
        o = torch.einsum("bhqk,bhkd->bhqd", p, v)
        return (lambda x, *d: x.permute(*d))(o, 0, 2, 1, 3).reshape(B, S, D) @ wo

    def _B_ref(x, w1, w2):
        h = torch.einsum("bsd,df->bsf", x, w1)
        zero = torch.zeros_like(h)
        h = torch.maximum(h, zero)
        return torch.einsum("bsf,fd->bsd", h, w2)

    x = A_x
    g = _sigmoid((x * gate_w).sum(-1, keepdims=True))
    a = _A_ref(x, A_wqkv, A_wo)
    b = _B_ref(x, B_w1, B_w2)
    return g * a + (1 - g) * b
```

```python
import sys

L = []
def e(s): L.append("    " + s)
def lab(s): L.append(s + ":")
def cm(s): L.append("    ; " + s)

WS_Q = 0x000000
WS_K = 0x200000
WS_V = 0x400000
WS_O = 0x600000
WS_G = 0x800000
WS_H = 0x900000
HROW = 1408 * 2
H_BYTES = 2048 * HROW

def srd(dst, ptr, off, nbytes):
    if off:
        e(f"s_add_u32 s{dst}, s{ptr}, 0x{off:x}")
        e(f"s_addc_u32 s{dst+1}, s{ptr+1}, 0")
    else:
        e(f"s_mov_b32 s{dst}, s{ptr}")
        e(f"s_mov_b32 s{dst+1}, s{ptr+1}")
    e(f"s_mov_b32 s{dst+2}, 0x{nbytes:x}")
    e(f"s_mov_b32 s{dst+3}, 0x00020000")

def vr(b, n):
    return f"v[{b}:{b+n-1}]"

def k1():
    lab("k1_gemm_kernel")
    e("s_load_dwordx2 s[4:5], s[0:1], 0")
    e("s_load_dwordx2 s[6:7], s[0:1], 8")
    e("s_load_dwordx2 s[8:9], s[0:1], 32")
    e("s_load_dwordx2 s[10:11], s[0:1], 48")
    e("s_load_dwordx2 s[12:13], s[0:1], 72")
    e("s_cmp_ge_u32 s2, 384")
    e("s_cbranch_scc1 K1_DONE")
    e("v_lshrrev_b32 v1, 6, v0")
    e("v_and_b32 v2, 63, v0")
    e("v_readfirstlane_b32 s31, v1")
    e("s_waitcnt lgkmcnt(0)")
    e("s_cmp_ge_u32 s2, 368")
    e("s_cbranch_scc1 K1_G")
    e("s_mov_b32 s35, 186737709")
    e("s_mul_hi_u32 s28, s2, s35")
    e("s_mul_i32 s35, s28, 23")
    e("s_sub_u32 s29, s2, s35")
    srd(16, 4, 0, 2048 * 1024)
    cm("W SRD / row stride select")
    e("s_cmp_ge_u32 s29, 12")
    e("s_cbranch_scc1 K1_W1")
    srd(20, 6, 0, 512 * 3072)
    e("s_movk_i32 s30, 3072")
    e("s_lshl_b32 s34, s29, 8")
    e("s_branch K1_WSET")
    lab("K1_W1")
    srd(20, 8, 0, 512 * 2752)
    e("s_movk_i32 s30, 2752")
    e("s_sub_u32 s34, s29, 12")
    e("s_lshl_b32 s34, s34, 8")
    lab("K1_WSET")
    cm("per-lane DMA offsets")
    e("v_lshrrev_b32 v3, 3, v2")
    e("v_and_b32 v4, 7, v2")
    e("v_lshrrev_b32 v5, 4, v2")
    e("v_xor_b32 v6, v4, v5")
    e("v_lshlrev_b32 v6, 4, v6")
    e("v_lshl_add_u32 v8, v3, 10, v6")
    e("v_xor_b32 v9, 64, v8")
    e("v_and_b32 v4, 15, v2")
    e("v_lshlrev_b32 v6, 2, v5")
    e("v_xor_b32 v4, v4, v6")
    e("v_lshlrev_b32 v4, 4, v4")
    e("v_mul_lo_u32 v6, v5, s30")
    e("v_add_u32 v10, v6, v4")
    cm("scalar bases")
    e("s_lshl_b32 s32, s31, 12")
    e("s_lshl_b32 s33, s28, 17")
    e("s_lshl_b32 s35, s31, 15")
    e("s_add_u32 s33, s33, s35")
    e("s_lshl_b32 s35, s31, 4")
    e("s_mul_i32 s35, s35, s30")
    e("s_add_u32 s34, s34, s35")
    cm("fragment read addresses")
    e("s_lshr_b32 s36, s31, 1")
    e("s_and_b32 s37, s31, 1")
    e("v_and_b32 v3, 31, v2")
    e("v_lshrrev_b32 v4, 5, v2")
    e("v_lshrrev_b32 v5, 1, v3")
    e("v_and_b32 v5, 7, v5")
    e("s_lshl_b32 s35, s36, 13")
    e("v_lshlrev_b32 v6, 7, v3")
    e("v_add_u32 v6, s35, v6")
    for kk in range(4):
        e(f"v_add_u32 v{12+kk}, {2*kk}, v4")
        e(f"v_xor_b32 v{12+kk}, v{12+kk}, v5")
        e(f"v_lshl_add_u32 v{12+kk}, v{12+kk}, 4, v6")
    e("v_lshrrev_b32 v3, 4, v2")
    e("v_and_b32 v4, 1, v3")
    e("v_lshrrev_b32 v3, 1, v3")
    e("v_and_b32 v5, 15, v2")
    e("v_lshrrev_b32 v6, 2, v5")
    e("v_and_b32 v5, 3, v5")
    e("v_lshl_add_u32 v7, v3, 3, v6")
    e("v_lshlrev_b32 v7, 8, v7")
    e("v_lshl_add_u32 v7, v4, 5, v7")
    e("v_lshl_add_u32 v7, v5, 3, v7")
    e("v_add_u32 v7, 0x4000, v7")
    for ni in range(2):
        e(f"s_lshl_b32 s35, s37, 1")
        e(f"s_add_u32 s35, s35, {ni}")
        e(f"v_xor_b32 v11, s35, v6")
        e(f"v_lshl_add_u32 v{16+ni}, v11, 6, v7")
    for r in range(64):
        e(f"v_mov_b32 v{64+r}, 0")

    def dma(stage):
        buf = stage & 1
        for i in range(4):
            e(f"s_add_u32 m0, s32, {buf*32768 + i*1024}")
            e(f"s_add_u32 s35, s33, {i*8192 + stage*128}")
            e(f"buffer_load_dwordx4 v{8 + (i & 1)}, s[16:19], s35 offen lds")
        for i in range(4):
            e(f"s_add_u32 m0, s32, {buf*32768 + 16384 + i*1024}")
            e(f"s_mul_i32 s35, s30, {stage*64 + i*4}")
            e(f"s_add_u32 s35, s35, s34")
            e(f"buffer_load_dwordx4 v10, s[20:23], s35 offen lds")

    def reads(buf, kk, fs):
        for mi in range(2):
            e(f"ds_read_b128 {vr(fs+4*mi,4)}, v{12+kk} offset:{buf*32768 + mi*4096}")
        for ni in range(2):
            e(f"ds_read_b64_tr_b16 {vr(fs+8+4*ni,2)}, v{16+ni} offset:{buf*32768 + kk*4096}")
            e(f"ds_read_b64_tr_b16 {vr(fs+8+4*ni+2,2)}, v{16+ni} offset:{buf*32768 + kk*4096 + 1024}")

    def mfmas(fs, orient):
        for ni in range(2):
            for mi in range(2):
                acc = 64 + (ni*2 + mi)*16
                X = vr(fs+4*mi, 4); W = vr(fs+8+4*ni, 4)
                if orient == 0:
                    e(f"v_mfma_f32_32x32x16_bf16 {vr(acc,16)}, {W}, {X}, {vr(acc,16)}")
                else:
                    e(f"v_mfma_f32_32x32x16_bf16 {vr(acc,16)}, {X}, {W}, {vr(acc,16)}")

    def mainloop(orient):
        for s in range(8):
            buf = s & 1
            e("s_waitcnt vmcnt(0)")
            e("s_barrier")
            if s + 1 < 8:
                dma(s + 1)
            reads(buf, 0, 32)
            reads(buf, 1, 48)
            for kk in range(4):
                fs = 32 + 16*(kk & 1)
                e(f"s_waitcnt lgkmcnt({6 if kk < 3 else 0})")
                mfmas(fs, orient)
                if kk + 2 < 4:
                    reads(buf, kk + 2, fs)

    dma(0)
    e("s_cmp_ge_u32 s29, 8")
    e("s_cbranch_scc0 K1_MAIN0")
    e("s_cmp_lt_u32 s29, 12")
    e("s_cbranch_scc1 K1_MAIN1")
    lab("K1_MAIN0")
    mainloop(0)
    e("s_nop 15")
    e("s_nop 15")
    e("v_and_b32 v3, 31, v2")
    e("v_lshrrev_b32 v4, 5, v2")
    e("s_lshl_b32 s35, s28, 7")
    e("s_lshl_b32 s38, s36, 6")
    e("s_add_u32 s35, s35, s38")
    e("v_add_u32 v3, s35, v3")
    e("s_cmp_ge_u32 s29, 12")
    e("s_cbranch_scc1 K1_EPI_H")
    e("s_cmp_ge_u32 s29, 4")
    e("s_cbranch_scc1 K1_EPI_K")
    srd(24, 12, WS_Q, 2048*1024)
    e("v_lshlrev_b32 v5, 10, v3")
    e("v_lshl_add_u32 v5, v4, 4, v5")
    e("s_lshl_b32 s35, s29, 8")
    e("s_lshl_b32 s38, s37, 7")
    e("s_add_u32 s35, s35, s38")
    def epi0(tokstride, relu=False, zero_last=False):
        for ni in range(2):
            for mi in range(2):
                acc = 64 + (ni*2+mi)*16
                for j in range(8):
                    e(f"v_cvt_pk_bf16_f32 v{32+j}, v{acc+2*j}, v{acc+2*j+1}")
                if relu:
                    for j in range(8):
                        e(f"v_pk_max_i16 v{32+j}, v{32+j}, 0")
                e("s_nop 1")
                for sg in range(2):
                    e(f"v_permlane32_swap_b32 v{32+4*sg}, v{32+4*sg+2}")
                    e(f"v_permlane32_swap_b32 v{32+4*sg+1}, v{32+4*sg+3}")
                yield ni, mi
    for ni, mi in epi0(1024):
        for sg in range(2):
            e(f"s_add_u32 s38, s35, {ni*64 + sg*32 + mi*32*1024}")
            e(f"buffer_store_dwordx4 {vr(32+4*sg,4)}, v5, s[24:27], s38 offen")
        e("s_nop 1")
    e("s_branch K1_DONE")
    lab("K1_EPI_K")
    srd(24, 12, WS_K, 2048*1024)
    e("v_lshlrev_b32 v5, 5, v3")
    e("v_lshl_add_u32 v5, v4, 4, v5")
    e("s_sub_u32 s35, s29, 4")
    e("s_lshl_b32 s35, s35, 19")
    e("s_lshl_b32 s38, s37, 18")
    e("s_add_u32 s35, s35, s38")
    for ni, mi in epi0(32):
        for sg in range(2):
            e(f"s_add_u32 s38, s35, {(ni*2+sg)*65536 + mi*32*32}")
            e(f"buffer_store_dwordx4 {vr(32+4*sg,4)}, v5, s[24:27], s38 offen")
        e("s_nop 1")
    e("s_branch K1_DONE")
    lab("K1_EPI_H")
    srd(24, 12, WS_H, H_BYTES)
    e(f"s_movk_i32 s38, {HROW}")
    e("v_mul_lo_u32 v5, v3, s38")
    e("v_lshl_add_u32 v5, v4, 4, v5")
    e("s_sub_u32 s35, s29, 12")
    e("s_lshl_b32 s35, s35, 8")
    e("s_lshl_b32 s38, s37, 7")
    e("s_add_u32 s35, s35, s38")
    cm("last N tile (22): columns 1376..1407 (wn=1, ni=1) must be written as zeros")
    e("s_cmp_eq_u32 s29, 22")
    e("s_cselect_b32 s39, 1, 0")
    e("s_cmp_eq_u32 s37, 1")
    e("s_cselect_b32 s40, 1, 0")
    e("s_and_b32 s39, s39, s40")
    e("s_cmp_eq_u32 s39, 1")
    e("s_cbranch_scc0 K1_H_NOZERO")
    for r in range(32):
        e(f"v_mov_b32 v{64+32+r}, 0")
    lab("K1_H_NOZERO")
    for ni, mi in epi0(HROW, relu=True):
        for sg in range(2):
            e(f"s_add_u32 s38, s35, {ni*64 + sg*32 + mi*32*HROW}")
            e(f"buffer_store_dwordx4 {vr(32+4*sg,4)}, v5, s[24:27], s38 offen")
        e("s_nop 1")
    e("s_branch K1_DONE")
    lab("K1_MAIN1")
    mainloop(1)
    e("s_nop 15")
    e("s_nop 15")
    srd(24, 12, WS_V, 2048*1024)
    e("v_and_b32 v3, 15, v2")
    e("v_lshrrev_b32 v4, 5, v2")
    e("v_lshrrev_b32 v5, 4, v2")
    e("v_and_b32 v5, 1, v5")
    e("v_lshl_add_u32 v3, v4, 4, v3")
    e("v_lshlrev_b32 v3, 4, v3")
    e("v_lshl_add_u32 v5, v5, 16, v3")
    e("s_sub_u32 s35, s29, 8")
    e("s_lshl_b32 s35, s35, 19")
    e("s_lshl_b32 s38, s37, 18")
    e("s_add_u32 s35, s35, s38")
    e("s_lshl_b32 s38, s28, 12")
    e("s_add_u32 s35, s35, s38")
    e("s_lshl_b32 s38, s36, 11")
    e("s_add_u32 s35, s35, s38")
    for ni in range(2):
        for mi in range(2):
            acc = 64 + (ni*2+mi)*16
            for j in range(8):
                e(f"v_cvt_pk_bf16_f32 v{32+j}, v{acc+2*j}, v{acc+2*j+1}")
            for c in range(2):
                e(f"s_add_u32 s38, s35, {ni*2*65536 + mi*1024 + c*512}")
                e(f"buffer_store_dwordx4 {vr(32+4*c,4)}, v5, s[24:27], s38 offen")
            e("s_nop 1")
    e("s_branch K1_DONE")
    lab("K1_G")
    srd(16, 4, 0, 2048*1024)
    srd(20, 10, 0, 1024)
    srd(24, 12, WS_G, 8192)
    e("s_sub_u32 s28, s2, 368")
    e("s_lshl_b32 s28, s28, 7")
    e("s_lshl_b32 s35, s31, 5")
    e("s_add_u32 s28, s28, s35")
    e("v_and_b32 v3, 15, v2")
    e("v_lshrrev_b32 v4, 4, v2")
    e("v_lshlrev_b32 v5, 6, v3")
    for j in range(4):
        e(f"buffer_load_dwordx4 {vr(8+4*j,4)}, v5, s[20:23], 0 offen offset:{16*j}")
    e("v_lshl_add_u32 v6, v4, 10, v5")
    e("s_lshl_b32 s35, s28, 10")
    e("s_waitcnt vmcnt(0)")
    for j in range(16):
        e(f"v_lshlrev_b32 v{32+2*j}, 16, v{8+j}")
        e(f"v_and_b32 v{32+2*j+1}, 0xffff0000, v{8+j}")
    for it in range(8):
        for j in range(4):
            e(f"buffer_load_dwordx4 {vr(8+4*j,4)}, v6, s[16:19], s35 offen offset:{16*j}")
        e("v_mov_b32 v24, 0")
        e("s_waitcnt vmcnt(0)")
        for j in range(16):
            e(f"v_lshlrev_b32 v25, 16, v{8+j}")
            e(f"v_and_b32 v26, 0xffff0000, v{8+j}")
            e(f"v_fmac_f32 v24, v25, v{32+2*j}")
            e(f"v_fmac_f32 v24, v26, v{32+2*j+1}")
        for sh in (8, 4, 2, 1):
            e("s_nop 1")
            e(f"v_add_f32_dpp v24, v24, v24 row_ror:{sh} row_mask:0xf bank_mask:0xf")
        e("v_mul_f32 v24, 0xbfb8aa3b, v24")
        e("v_exp_f32 v24, v24")
        e("s_nop 0")
        e("v_add_f32 v24, 1.0, v24")
        e("v_rcp_f32 v24, v24")
        e("v_lshlrev_b32 v25, 2, v4")
        e(f"s_lshl_b32 s38, s28, 2")
        e(f"s_add_u32 s38, s38, {it*16}")
        e("buffer_store_dword v24, v25, s[24:27], s38 offen")
        e("s_add_u32 s35, s35, 4096")
    lab("K1_DONE")
    e("s_endpgm")

C_SCALE = 0.25 * 1.4426950408889634
import struct
def f32hex(x):
    return "0x%08x" % struct.unpack("<I", struct.pack("<f", x))[0]

def k2():
    lab("k2_attn_kernel")
    e("s_load_dwordx2 s[12:13], s[0:1], 72")
    e("s_cmp_ge_u32 s2, 256")
    e("s_cbranch_scc1 K2_DONE")
    e("v_lshrrev_b32 v1, 6, v0")
    e("v_and_b32 v2, 63, v0")
    e("v_readfirstlane_b32 s31, v1")
    e("s_lshr_b32 s28, s2, 3")
    e("s_and_b32 s29, s2, 7")
    e("s_waitcnt lgkmcnt(0)")
    e("s_lshl_b32 s35, s28, 16")
    e("s_add_u32 s16, s12, s35")
    e("s_addc_u32 s17, s13, 0")
    e(f"s_add_u32 s20, s16, 0x{WS_V:x}")
    e("s_addc_u32 s21, s17, 0")
    e(f"s_add_u32 s16, s16, 0x{WS_K:x}")
    e("s_addc_u32 s17, s17, 0")
    e("s_mov_b32 s18, 0x10000")
    e("s_mov_b32 s19, 0x00020000")
    e("s_mov_b32 s22, 0x10000")
    e("s_mov_b32 s23, 0x00020000")
    srd(24, 12, WS_Q, 2048*1024)
    cm("Q fragment load")
    e("v_and_b32 v3, 31, v2")
    e("v_lshrrev_b32 v4, 5, v2")
    e("s_lshl_b32 s35, s29, 8")
    e("s_lshl_b32 s36, s31, 5")
    e("s_add_u32 s35, s35, s36")
    e("v_add_u32 v3, s35, v3")
    e("v_lshlrev_b32 v5, 10, v3")
    e("v_lshl_add_u32 v5, v4, 4, v5")
    e("s_lshl_b32 s36, s28, 5")
    VQ = 8
    e(f"buffer_load_dwordx4 {vr(VQ,4)}, v5, s[24:27], s36 offen")
    cm("K/V DMA : all chunks up front")
    e("v_lshlrev_b32 v6, 4, v2")
    e("s_lshl_b32 s32, s31, 10")
    for ci in range(8):
        e(f"s_add_u32 m0, s32, {ci*8192}")
        e(f"s_add_u32 s36, s32, {ci*8192}")
        e(f"buffer_load_dwordx4 v6, s[16:19], s36 offen lds")
        e(f"s_add_u32 m0, s32, {65536 + ci*8192}")
        e(f"buffer_load_dwordx4 v6, s[20:23], s36 offen lds")
    cm("const area (ones) at LDS 131072")
    e("v_mov_b32 v12, 0x3f803f80")
    e("v_mov_b32 v13, 0x3f803f80")
    e("v_mov_b32 v14, 0x3f803f80")
    e("v_mov_b32 v15, 0x3f803f80")
    e("v_mov_b32 v7, 0x20000")
    e("ds_write_b128 v7, v[12:15]")
    e("ds_write_b128 v7, v[12:15] offset:512")
    cm("fragment addresses")
    VKA, VVA, VVS = 16, 17, 18
    e(f"v_lshlrev_b32 v{VKA}, 5, v2")
    e(f"v_and_b32 v{VKA}, 0x3e0, v{VKA}")
    e(f"v_lshl_add_u32 v{VKA}, v4, 4, v{VKA}")
    e("v_and_b32 v3, 31, v2")
    e("v_and_b32 v5, 15, v2")
    e("v_lshl_add_u32 v5, v4, 4, v5")
    e("v_lshlrev_b32 v5, 4, v5")
    e("v_add_u32 v5, 0x10000, v5")
    e("v_cmp_gt_u32 vcc, 16, v3")
    e("v_mov_b32 v7, 0x20000")
    e("v_mov_b32 v12, 0x400")
    e(f"v_cndmask_b32 v{VVA}, v7, v5, vcc")
    e(f"v_cndmask_b32 v{VVS}, 0, v12, vcc")
    VM, VMC, VMT, VTM, VTMP = 19, 20, 21, 22, 23
    e(f"v_mov_b32 v{VM}, 0xf149f2ca")
    e(f"v_mov_b32 v{VMC}, 0")
    e(f"v_mov_b32 v{VMT}, 0xf149f2ca")
    VKF = 24
    VVF = 32
    VP = 40
    VS = 48
    VO = 80
    for r in range(16):
        e(f"v_mov_b32 v{VO+r}, 0")
    e(f"s_mov_b32 s40, {f32hex(C_SCALE)}")
    e(f"s_mov_b32 s41, {f32hex(8.0 / C_SCALE)}")
    e("s_mov_b32 s42, 0")
    cm("wait chunk 0,1 (+Q)")
    e("s_waitcnt vmcnt(12) lgkmcnt(0)")
    e("s_barrier")
    e(f"ds_read_b128 {vr(VKF,4)}, v{VKA}")
    e("s_waitcnt lgkmcnt(0)")
    e(f"v_mfma_f32_32x32x16_bf16 {vr(VS,16)}, {vr(VKF,4)}, {vr(VQ,4)}, 0")
    slow = []
    lab("K2_CHUNK")
    for t in range(8):
        par = t & 1
        S = VS + 16*par
        Sn = VS + 16*(1-par)
        Kn = VKF + 4*(1-par)
        cm(f"--- tile {t}")
        e(f"ds_read_b128 {vr(Kn,4)}, v{VKA} offset:{(t+1)*1024}")
        e(f"ds_read_b128 {vr(VVF,4)}, v{VVA}")
        e(f"ds_read_b128 {vr(VVF+4,4)}, v{VVA} offset:512")
        e(f"v_add_u32 v{VVA}, v{VVA}, v{VVS}")
        e(f"v_max3_f32 v{VTM}, v{S}, v{S+1}, v{S+2}")
        for j in range(6):
            e(f"v_max3_f32 v{VTM}, v{VTM}, v{S+3+2*j}, v{S+4+2*j}")
        e(f"v_max_f32 v{VTM}, v{VTM}, v{S+15}")
        e(f"s_waitcnt lgkmcnt(2)")
        e(f"v_mfma_f32_32x32x16_bf16 {vr(Sn,16)}, {vr(Kn,4)}, {vr(VQ,4)}, 0")
        e(f"v_cmp_gt_f32 vcc, v{VTM}, v{VMT}")
        e(f"s_cbranch_vccnz K2_SLOW{t}")
        lab(f"K2_FAST{t}")
        for r in range(16):
            e(f"v_fma_f32 v{S+r}, v{S+r}, s40, -v{VMC}")
        for r in range(16):
            e(f"v_exp_f32 v{S+r}, v{S+r}")
        e("s_nop 0")
        for j in range(8):
            e(f"v_cvt_pk_bf16_f32 v{VP+j}, v{S+2*j}, v{S+2*j+1}")
        e("s_waitcnt lgkmcnt(0)")
        e(f"v_mfma_f32_32x32x16_bf16 {vr(VO,16)}, {vr(VVF,4)}, {vr(VP,4)}, {vr(VO,16)}")
        e(f"v_mfma_f32_32x32x16_bf16 {vr(VO,16)}, {vr(VVF+4,4)}, {vr(VP+4,4)}, {vr(VO,16)}")
        slow.append((t,))
    cm("next chunk")
    e(f"v_add_u32 v{VKA}, 0x2000, v{VKA}")
    e("s_add_u32 s42, s42, 1")
    e("s_cmp_eq_u32 s42, 8")
    e("s_cbranch_scc1 K2_EPI")
    cm("wait for the chunk after the next one")
    for c in range(1, 7):
        e(f"s_cmp_eq_u32 s42, {c}")
        e(f"s_cbranch_scc0 K2_W{c}")
        e(f"s_waitcnt vmcnt({12 - 2*c})")
        lab(f"K2_W{c}")
    e("s_barrier")
    e("s_branch K2_CHUNK")
    for (t,) in slow:
        S = VS + 16*(t & 1)
        lab(f"K2_SLOW{t}")
        e(f"v_mov_b32 v{VTMP}, v{VTM}")
        e("s_nop 1")
        e(f"v_permlane32_swap_b32 v{VTM}, v{VTMP}")
        e(f"v_max_f32 v{VTM}, v{VTM}, v{VTMP}")
        e(f"v_max_f32 v{VTM}, v{VTM}, v{VM}")
        e(f"v_sub_f32 v{VTMP}, v{VM}, v{VTM}")
        e(f"v_mul_f32 v{VTMP}, s40, v{VTMP}")
        e(f"v_exp_f32 v{VTMP}, v{VTMP}")
        e(f"v_mov_b32 v{VM}, v{VTM}")
        e(f"v_mul_f32 v{VMC}, s40, v{VTM}")
        e(f"v_add_f32 v{VMT}, s41, v{VTM}")
        e("s_nop 7")
        e("s_nop 7")
        for r in range(9):
            e(f"v_mul_f32 v{VO+r}, v{VO+r}, v{VTMP}")
        e("s_nop 1")
        e(f"s_branch K2_FAST{t}")
    lab("K2_EPI")
    e("s_nop 15")
    e("s_nop 15")
    e(f"v_rcp_f32 v{VTM}, v{VO+8}")
    e("s_nop 0")
    for r in range(8):
        e(f"v_mul_f32 v{VO+r}, v{VO+r}, v{VTM}")
    for j in range(4):
        e(f"v_cvt_pk_bf16_f32 v{VP+j}, v{VO+2*j}, v{VO+2*j+1}")
    e("s_nop 1")
    e(f"v_permlane32_swap_b32 v{VP}, v{VP+2}")
    e(f"v_permlane32_swap_b32 v{VP+1}, v{VP+3}")
    srd(24, 12, WS_O, 2048*1024)
    e("v_and_b32 v3, 31, v2")
    e("v_lshrrev_b32 v4, 5, v2")
    e("v_add_u32 v3, s35, v3")
    e("v_lshlrev_b32 v5, 10, v3")
    e("v_lshl_add_u32 v5, v4, 4, v5")
    e("s_lshl_b32 s36, s28, 5")
    e(f"buffer_store_dwordx4 {vr(VP,4)}, v5, s[24:27], s36 offen")
    lab("K2_DONE")
    e("s_endpgm")

def k3():
    lab("k3_out_kernel")
    e("s_load_dwordx2 s[4:5], s[0:1], 16")
    e("s_load_dwordx2 s[6:7], s[0:1], 40")
    e("s_load_dwordx2 s[8:9], s[0:1], 56")
    e("s_load_dwordx2 s[12:13], s[0:1], 72")
    e("s_cmp_ge_u32 s2, 256")
    e("s_cbranch_scc1 K3_DONE")
    e("v_lshrrev_b32 v1, 6, v0")
    e("v_and_b32 v2, 63, v0")
    e("v_readfirstlane_b32 s31, v1")
    e("s_lshr_b32 s28, s2, 3")
    e("s_and_b32 s29, s2, 7")
    e("s_waitcnt lgkmcnt(0)")
    srd(16, 12, WS_O, 2048*1024)
    srd(20, 12, WS_H, H_BYTES)
    srd(24, 4, 0, 512*1024)
    srd(44, 6, 0, 1376*1024)
    cm("DMA lane offsets: A tile rows of 128B, 8 rows per instr")
    e("v_lshrrev_b32 v3, 3, v2")
    e("v_and_b32 v4, 7, v2")
    e("v_lshrrev_b32 v5, 4, v2")
    e("v_xor_b32 v6, v4, v5")
    e("v_lshlrev_b32 v6, 4, v6")
    e("v_lshl_add_u32 v8, v3, 10, v6")
    e("v_xor_b32 v9, 64, v8")
    e(f"s_movk_i32 s35, {HROW}")
    e("v_mul_lo_u32 v7, v3, s35")
    e("v_add_u32 v10, v7, v6")
    e("v_xor_b32 v6, 64, v6")
    e("v_add_u32 v11, v7, v6")
    cm("B tile: rows of 128B (64 cols), 8 rows per instr ; chunk ^= ((row>>1)&1)<<2")
    e("v_lshrrev_b32 v5, 1, v3")
    e("v_and_b32 v5, 1, v5")
    e("v_lshlrev_b32 v5, 2, v5")
    e("v_xor_b32 v5, v5, v4")
    e("v_lshlrev_b32 v5, 4, v5")
    e("v_lshl_add_u32 v12, v3, 10, v5")
    cm("scalar bases")
    e("s_lshl_b32 s32, s31, 11")
    e("s_lshl_b32 s33, s28, 6")
    e("s_lshl_b32 s35, s31, 4")
    e("s_add_u32 s33, s33, s35")
    e("s_lshl_b32 s34, s33, 10")
    e(f"s_mul_i32 s36, s33, {HROW}")
    e("s_lshl_b32 s37, s29, 7")
    e("s_lshl_b32 s35, s31, 14")
    e("s_add_u32 s37, s37, s35")
    cm("fragment addresses")
    e("s_lshr_b32 s38, s31, 1")
    e("s_and_b32 s39, s31, 1")
    e("v_and_b32 v3, 31, v2")
    e("v_lshrrev_b32 v4, 5, v2")
    e("v_lshrrev_b32 v5, 1, v3")
    e("v_and_b32 v5, 7, v5")
    e("s_lshl_b32 s35, s38, 12")
    e("v_lshlrev_b32 v6, 7, v3")
    e("v_add_u32 v6, s35, v6")
    for kk in range(4):
        e(f"v_add_u32 v{13+kk}, {2*kk}, v4")
        e(f"v_xor_b32 v{13+kk}, v{13+kk}, v5")
        e(f"v_lshl_add_u32 v{13+kk}, v{13+kk}, 4, v6")
    e("v_lshrrev_b32 v3, 4, v2")
    e("v_and_b32 v4, 1, v3")
    e("v_lshrrev_b32 v3, 1, v3")
    e("v_and_b32 v5, 15, v2")
    e("v_lshrrev_b32 v6, 2, v5")
    e("v_and_b32 v5, 3, v5")
    e("v_lshl_add_u32 v7, v3, 3, v6")
    e("v_lshlrev_b32 v7, 7, v7")
    e("v_lshl_add_u32 v7, v4, 5, v7")
    e("v_lshl_add_u32 v7, v5, 3, v7")
    e("v_lshrrev_b32 v6, 1, v6")
    e("v_xor_b32 v6, s39, v6")
    e("v_lshl_add_u32 v17, v6, 6, v7")
    e("v_add_u32 v17, 0x2000, v17")
    ACC = 64
    for r in range(32):
        e(f"v_mov_b32 v{ACC+r}, 0")
    NST = 30
    NBUF = 3
    def dma(s):
        buf = s % NBUF
        for i in range(2):
            e(f"s_add_u32 m0, s32, {buf*16384 + i*1024}")
            if s < 8:
                e(f"s_add_u32 s35, s34, {i*8192 + s*128}")
                e(f"buffer_load_dwordx4 v{8+i}, s[16:19], s35 offen lds")
            else:
                e(f"s_add_u32 s35, s36, {i*8*HROW + (s-8)*128}")
                e(f"buffer_load_dwordx4 v{10+i}, s[20:23], s35 offen lds")
        for i in range(2):
            e(f"s_add_u32 m0, s32, {buf*16384 + 8192 + i*1024}")
            if s < 8:
                e(f"s_add_u32 s35, s37, {(s*64 + i*8)*1024}")
                e(f"buffer_load_dwordx4 v12, s[24:27], s35 offen lds")
            else:
                e(f"s_add_u32 s35, s37, {((s-8)*64 + i*8)*1024}")
                e(f"buffer_load_dwordx4 v12, s[44:47], s35 offen lds")
    dma(0)
    dma(1)
    F = 32
    for s in range(NST):
        buf = s % NBUF
        e(f"s_waitcnt vmcnt({4 if s + 1 < NST else 0})")
        e("s_barrier")
        if s + 2 < NST:
            dma(s + 2)
        for kk in range(4):
            fs = F + 8*kk
            e(f"ds_read_b128 {vr(fs,4)}, v{13+kk} offset:{buf*16384}")
            e(f"ds_read_b64_tr_b16 {vr(fs+4,2)}, v17 offset:{buf*16384 + kk*2048}")
            e(f"ds_read_b64_tr_b16 {vr(fs+6,2)}, v17 offset:{buf*16384 + kk*2048 + 512}")
        acc = ACC if s < 8 else ACC + 16
        for kk in range(4):
            fs = F + 8*kk
            e(f"s_waitcnt lgkmcnt({9 - 3*kk})")
            e(f"v_mfma_f32_32x32x16_bf16 {vr(acc,16)}, {vr(fs+4,4)}, {vr(fs,4)}, {vr(acc,16)}")
    e("s_nop 15")
    e("s_nop 15")
    cm("epilogue")
    srd(16, 12, WS_G, 8192)
    srd(20, 8, 0, 2048*1024)
    e("v_and_b32 v3, 31, v2")
    e("v_lshrrev_b32 v4, 5, v2")
    e("s_lshl_b32 s35, s28, 6")
    e("s_lshl_b32 s36, s38, 5")
    e("s_add_u32 s35, s35, s36")
    e("v_add_u32 v3, s35, v3")
    e("v_lshlrev_b32 v5, 2, v3")
    e("buffer_load_dword v6, v5, s[16:19], 0 offen")
    e("v_lshlrev_b32 v5, 10, v3")
    e("v_lshl_add_u32 v5, v4, 4, v5")
    e("s_lshl_b32 s35, s29, 7")
    e("s_lshl_b32 s36, s39, 6")
    e("s_add_u32 s35, s35, s36")
    e("s_waitcnt vmcnt(0)")
    e("v_sub_f32 v7, 1.0, v6")
    for r in range(16):
        e(f"v_mul_f32 v{ACC+16+r}, v{ACC+16+r}, v7")
        e(f"v_fma_f32 v{ACC+r}, v{ACC+r}, v6, v{ACC+16+r}")
    for j in range(8):
        e(f"v_cvt_pk_bf16_f32 v{32+j}, v{ACC+2*j}, v{ACC+2*j+1}")
    e("s_nop 1")
    for sg in range(2):
        e(f"v_permlane32_swap_b32 v{32+4*sg}, v{32+4*sg+2}")
        e(f"v_permlane32_swap_b32 v{32+4*sg+1}, v{32+4*sg+3}")
    for sg in range(2):
        e(f"buffer_store_dwordx4 {vr(32+4*sg,4)}, v5, s[20:23], s35 offen offset:{sg*32}")
    lab("K3_DONE")
    e("s_endpgm")

HEADER = open("gated_mix__softmax_full_mha__dense_activation_relu__prompt.s.ref").read().split("\n")
hdr = []
for ln in HEADER:
    if ln.startswith("; @launch"):
        break
    hdr.append(ln)
out = hdr[:]
out.append("; @launch kernel=k1_gemm_kernel grid=(384,1,1) block=(256,1,1) lds=65536")
out.append("; @launch kernel=k2_attn_kernel grid=(256,1,1) block=(512,1,1) lds=132096")
out.append("; @launch kernel=k3_out_kernel grid=(256,1,1) block=(256,1,1) lds=49152")
out.append('.amdgcn_target "amdgcn-amd-amdhsa--gfx950"')
out.append(".text")
kernels = [("k1_gemm_kernel", k1, 128), ("k2_attn_kernel", k2, 96), ("k3_out_kernel", k3, 96)]
for name, fn, nv in kernels:
    out.append(f".globl {name}")
    out.append(".p2align 8")
    out.append(f".type {name},@function")
    L.clear()
    fn()
    out.extend(L)
out.append('.section .rodata,"a"')
for name, fn, nv in kernels:
    out.append(".p2align 6")
    out.append(f".amdhsa_kernel {name}")
    out.append(f"  .amdhsa_next_free_vgpr {nv}")
    out.append("  .amdhsa_next_free_sgpr 102")
    out.append(f"  .amdhsa_accum_offset {nv}")
    out.append("  .amdhsa_group_segment_fixed_size 0")
    out.append("  .amdhsa_kernarg_size 80")
    out.append("  .amdhsa_user_sgpr_count 2")
    out.append("  .amdhsa_user_sgpr_kernarg_segment_ptr 1")
    out.append("  .amdhsa_system_sgpr_workgroup_id_x 1")
    out.append(".end_amdhsa_kernel")
open(sys.argv[1] if len(sys.argv) > 1 else "gated_mix__softmax_full_mha__dense_activation_relu__prompt.s", "w").write("\n".join(out) + "\n")
```

```python
import sys

L = []
def e(s): L.append("    " + s)
def lab(s): L.append(s + ":")
def cm(s): L.append("    ; " + s)

import struct
C_SCALE = 0.25 * 1.4426950408889634
def f32hex(x):
    return "0x%08x" % struct.unpack("<I", struct.pack("<f", x))[0]
WS_Q = 0x000000
WS_K = 0x200000
WS_V = 0x400000
WS_O = 0x600000
WS_G = 0x800000
WS_H = 0x900000
HROW = 1408 * 2
H_BYTES = 2048 * HROW

def srd(dst, ptr, off, nbytes):
    if off:
        e(f"s_add_u32 s{dst}, s{ptr}, 0x{off:x}")
        e(f"s_addc_u32 s{dst+1}, s{ptr+1}, 0")
    else:
        e(f"s_mov_b32 s{dst}, s{ptr}")
        e(f"s_mov_b32 s{dst+1}, s{ptr+1}")
    e(f"s_mov_b32 s{dst+2}, 0x{nbytes:x}")
    e(f"s_mov_b32 s{dst+3}, 0x00020000")

def vr(b, n):
    return f"v[{b}:{b+n-1}]"

def k1():
    lab("k1_gemm_kernel")
    e("s_load_dwordx2 s[4:5], s[0:1], 0")
    e("s_load_dwordx2 s[6:7], s[0:1], 8")
    e("s_load_dwordx2 s[8:9], s[0:1], 32")
    e("s_load_dwordx2 s[10:11], s[0:1], 48")
    e("s_load_dwordx2 s[12:13], s[0:1], 72")
    e("s_cmp_ge_u32 s2, 200")
    e("s_cbranch_scc1 K1_DONE")
    e("v_lshrrev_b32 v1, 6, v0")
    e("v_and_b32 v2, 63, v0")
    e("v_readfirstlane_b32 s31, v1")
    e("s_waitcnt lgkmcnt(0)")
    e("s_cmp_ge_u32 s2, 184")
    e("s_cbranch_scc1 K1_G")
    e("s_and_b32 s28, s2, 7")
    e("s_lshr_b32 s29, s2, 3")
    srd(16, 4, 0, 2048 * 1024)
    cm("W SRD / row stride select")
    e("s_cmp_ge_u32 s29, 12")
    e("s_cbranch_scc1 K1_W1")
    srd(20, 6, 0, 512 * 3072)
    e("s_movk_i32 s30, 3072")
    e("s_lshl_b32 s34, s29, 8")
    e("s_branch K1_WSET")
    lab("K1_W1")
    srd(20, 8, 0, 512 * 2752)
    e("s_movk_i32 s30, 2752")
    e("s_sub_u32 s34, s29, 12")
    e("s_lshl_b32 s34, s34, 8")
    lab("K1_WSET")
    cm("per-lane DMA offsets (BK=32: x rows of 64B, 16 rows per instr)")
    e("v_lshrrev_b32 v3, 2, v2")
    e("v_and_b32 v4, 3, v2")
    e("v_lshrrev_b32 v5, 4, v2")
    e("v_xor_b32 v6, v4, v5")
    e("v_lshlrev_b32 v6, 4, v6")
    e("v_lshl_add_u32 v8, v3, 10, v6")
    e("v_and_b32 v4, 15, v2")
    e("v_lshlrev_b32 v6, 2, v5")
    e("v_xor_b32 v4, v4, v6")
    e("v_lshlrev_b32 v4, 4, v4")
    e("v_mul_lo_u32 v6, v5, s30")
    e("v_add_u32 v10, v6, v4")
    cm("scalar bases")
    e("s_lshl_b32 s32, s31, 11")
    e("s_lshl_b32 s44, s31, 10")
    e("s_lshl_b32 s33, s28, 18")
    e("s_lshl_b32 s35, s31, 15")
    e("s_add_u32 s33, s33, s35")
    e("s_lshl_b32 s35, s31, 2")
    e("s_mul_i32 s35, s35, s30")
    e("s_add_u32 s34, s34, s35")
    cm("fragment read addresses")
    e("s_lshr_b32 s36, s31, 1")
    e("s_and_b32 s37, s31, 1")
    e("v_and_b32 v3, 31, v2")
    e("v_lshrrev_b32 v4, 5, v2")
    e("v_lshrrev_b32 v5, 2, v3")
    e("v_and_b32 v5, 3, v5")
    e("s_lshl_b32 s35, s36, 12")
    e("v_lshlrev_b32 v6, 6, v3")
    e("v_add_u32 v6, s35, v6")
    for kk in range(2):
        e(f"v_add_u32 v{12+kk}, {2*kk}, v4")
        e(f"v_xor_b32 v{12+kk}, v{12+kk}, v5")
        e(f"v_lshl_add_u32 v{12+kk}, v{12+kk}, 4, v6")
    e("v_lshrrev_b32 v3, 4, v2")
    e("v_and_b32 v4, 1, v3")
    e("v_lshrrev_b32 v3, 1, v3")
    e("v_and_b32 v5, 15, v2")
    e("v_lshrrev_b32 v6, 2, v5")
    e("v_and_b32 v5, 3, v5")
    e("v_lshl_add_u32 v7, v3, 3, v6")
    e("v_lshlrev_b32 v7, 8, v7")
    e("v_lshl_add_u32 v7, v4, 5, v7")
    e("v_lshl_add_u32 v7, v5, 3, v7")
    e("v_add_u32 v7, 0x4000, v7")
    for ni in range(2):
        e(f"s_lshl_b32 s35, s37, 1")
        e(f"s_add_u32 s35, s35, {ni}")
        e(f"v_xor_b32 v11, s35, v6")
        e(f"v_lshl_add_u32 v{16+ni}, v11, 6, v7")
    for kk in range(2):
        e(f"v_add_u32 v{18+kk}, 0xc000, v{12+kk}")
        e(f"v_add_u32 v{20+kk}, 0xc000, v{16+kk}")
    for r in range(64):
        e(f"v_mov_b32 v{64+r}, 0")

    NB = 4
    NS = 16
    def dma(stage):
        buf = stage % NB
        for i in range(2):
            e(f"s_add_u32 m0, s32, {buf*24576 + i*1024}")
            e(f"s_add_u32 s35, s33, {i*16384 + stage*64}")
            e(f"buffer_load_dwordx4 v8, s[16:19], s35 offen lds")
        e(f"s_add_u32 m0, s44, {buf*24576 + 16384}")
        e(f"s_mul_i32 s35, s30, {stage*32}")
        e(f"s_add_u32 s35, s35, s34")
        e(f"buffer_load_dwordx4 v10, s[20:23], s35 offen lds")

    def reads(buf, kk, fs):
        hb = buf >= 2
        bo = (buf & 1) * 24576
        for mi in range(2):
            e(f"ds_read_b128 {vr(fs+4*mi,4)}, v{(18 if hb else 12)+kk} offset:{bo + mi*2048}")
        for ni in range(2):
            e(f"ds_read_b64_tr_b16 {vr(fs+8+4*ni,2)}, v{(20 if hb else 16)+ni} offset:{bo + kk*4096}")
            e(f"ds_read_b64_tr_b16 {vr(fs+8+4*ni+2,2)}, v{(20 if hb else 16)+ni} offset:{bo + kk*4096 + 1024}")

    def mfmas(fs, orient):
        for ni in range(2):
            for mi in range(2):
                acc = 64 + (ni*2 + mi)*16
                X = vr(fs+4*mi, 4); W = vr(fs+8+4*ni, 4)
                if orient == 0:
                    e(f"v_mfma_f32_32x32x16_bf16 {vr(acc,16)}, {W}, {X}, {vr(acc,16)}")
                else:
                    e(f"v_mfma_f32_32x32x16_bf16 {vr(acc,16)}, {X}, {W}, {vr(acc,16)}")

    def mainloop(orient):
        def fset(s): return 32 if (s & 1) == 0 else 128
        e("s_waitcnt vmcnt(6)")
        e("s_barrier")
        reads(0, 0, fset(0)); reads(0, 1, fset(0) + 16)
        for s in range(NS):
            if s + 1 < NS:
                rem = min(NB - 3, NS - 2 - s)
                e(f"s_waitcnt vmcnt({3*max(rem,0)}) lgkmcnt(0)")
                e("s_barrier")
                if s + NB - 1 < NS:
                    dma(s + NB - 1)
                reads((s+1) % NB, 0, fset(s+1)); reads((s+1) % NB, 1, fset(s+1) + 16)
            else:
                e("s_waitcnt lgkmcnt(0)")
            mfmas(fset(s), orient)
            mfmas(fset(s) + 16, orient)

    dma(0)
    dma(1)
    dma(2)
    e("s_cmp_ge_u32 s29, 8")
    e("s_cbranch_scc0 K1_MAIN0")
    e("s_cmp_lt_u32 s29, 12")
    e("s_cbranch_scc1 K1_MAIN1")
    lab("K1_MAIN0")
    mainloop(0)
    e("s_nop 15")
    e("s_nop 15")
    e("v_and_b32 v3, 31, v2")
    e("v_lshrrev_b32 v4, 5, v2")
    e("s_lshl_b32 s35, s28, 8")
    e("s_lshl_b32 s38, s36, 6")
    e("s_add_u32 s35, s35, s38")
    e("v_add_u32 v3, s35, v3")
    e("s_cmp_ge_u32 s29, 12")
    e("s_cbranch_scc1 K1_EPI_H")
    e("s_cmp_ge_u32 s29, 4")
    e("s_cbranch_scc1 K1_EPI_K")
    srd(24, 12, WS_Q, 2048*1024)
    e("v_lshlrev_b32 v5, 10, v3")
    e("v_lshl_add_u32 v5, v4, 4, v5")
    e("s_lshl_b32 s35, s29, 8")
    e("s_lshl_b32 s38, s37, 7")
    e("s_add_u32 s35, s35, s38")
    def epi0(tokstride, relu=False, qscale=False):
        for ni in range(2):
            for mi in range(2):
                acc = 64 + (ni*2+mi)*16
                if qscale:
                    for r in range(16):
                        e(f"v_mul_f32 v{acc+r}, {f32hex(C_SCALE)}, v{acc+r}")
                for j in range(8):
                    e(f"v_cvt_pk_bf16_f32 v{32+j}, v{acc+2*j}, v{acc+2*j+1}")
                if relu:
                    for j in range(8):
                        e(f"v_pk_max_i16 v{32+j}, v{32+j}, 0")
                e("s_nop 1")
                for sg in range(2):
                    e(f"v_permlane32_swap_b32 v{32+4*sg}, v{32+4*sg+2}")
                    e(f"v_permlane32_swap_b32 v{32+4*sg+1}, v{32+4*sg+3}")
                yield ni, mi
    for ni, mi in epi0(1024, qscale=True):
        for sg in range(2):
            e(f"s_add_u32 s38, s35, {ni*64 + sg*32 + mi*32*1024}")
            e(f"buffer_store_dwordx4 {vr(32+4*sg,4)}, v5, s[24:27], s38 offen")
        e("s_nop 1")
    e("s_branch K1_DONE")
    lab("K1_EPI_K")
    srd(24, 12, WS_K, 2048*1024)
    e("v_lshlrev_b32 v5, 5, v3")
    e("v_lshl_add_u32 v5, v4, 4, v5")
    e("s_sub_u32 s35, s29, 4")
    e("s_lshl_b32 s35, s35, 19")
    e("s_lshl_b32 s38, s37, 18")
    e("s_add_u32 s35, s35, s38")
    for ni, mi in epi0(32):
        for sg in range(2):
            e(f"s_add_u32 s38, s35, {(ni*2+sg)*65536 + mi*32*32}")
            e(f"buffer_store_dwordx4 {vr(32+4*sg,4)}, v5, s[24:27], s38 offen")
        e("s_nop 1")
    e("s_branch K1_DONE")
    lab("K1_EPI_H")
    srd(24, 12, WS_H, H_BYTES)
    e(f"s_movk_i32 s38, {HROW}")
    e("v_mul_lo_u32 v5, v3, s38")
    e("v_lshl_add_u32 v5, v4, 4, v5")
    e("s_sub_u32 s35, s29, 12")
    e("s_lshl_b32 s35, s35, 8")
    e("s_lshl_b32 s38, s37, 7")
    e("s_add_u32 s35, s35, s38")
    cm("last N tile (22): columns 1376..1407 (wn=1, ni=1) must be written as zeros")
    e("s_cmp_eq_u32 s29, 22")
    e("s_cselect_b32 s39, 1, 0")
    e("s_cmp_eq_u32 s37, 1")
    e("s_cselect_b32 s40, 1, 0")
    e("s_and_b32 s39, s39, s40")
    e("s_cmp_eq_u32 s39, 1")
    e("s_cbranch_scc0 K1_H_NOZERO")
    for r in range(32):
        e(f"v_mov_b32 v{64+32+r}, 0")
    lab("K1_H_NOZERO")
    for ni, mi in epi0(HROW, relu=True):
        for sg in range(2):
            e(f"s_add_u32 s38, s35, {ni*64 + sg*32 + mi*32*HROW}")
            e(f"buffer_store_dwordx4 {vr(32+4*sg,4)}, v5, s[24:27], s38 offen")
        e("s_nop 1")
    e("s_branch K1_DONE")
    lab("K1_MAIN1")
    mainloop(1)
    e("s_nop 15")
    e("s_nop 15")
    srd(24, 12, WS_V, 2048*1024)
    e("v_and_b32 v3, 15, v2")
    e("v_lshrrev_b32 v4, 5, v2")
    e("v_lshrrev_b32 v5, 4, v2")
    e("v_and_b32 v5, 1, v5")
    e("v_lshl_add_u32 v3, v4, 4, v3")
    e("v_lshlrev_b32 v3, 4, v3")
    e("v_lshl_add_u32 v5, v5, 16, v3")
    e("s_sub_u32 s35, s29, 8")
    e("s_lshl_b32 s35, s35, 19")
    e("s_lshl_b32 s38, s37, 18")
    e("s_add_u32 s35, s35, s38")
    e("s_lshl_b32 s38, s28, 13")
    e("s_add_u32 s35, s35, s38")
    e("s_lshl_b32 s38, s36, 11")
    e("s_add_u32 s35, s35, s38")
    for ni in range(2):
        for mi in range(2):
            acc = 64 + (ni*2+mi)*16
            for j in range(8):
                e(f"v_cvt_pk_bf16_f32 v{32+j}, v{acc+2*j}, v{acc+2*j+1}")
            for c in range(2):
                e(f"s_add_u32 s38, s35, {ni*2*65536 + mi*1024 + c*512}")
                e(f"buffer_store_dwordx4 {vr(32+4*c,4)}, v5, s[24:27], s38 offen")
            e("s_nop 1")
    e("s_branch K1_DONE")
    lab("K1_G")
    srd(16, 4, 0, 2048*1024)
    srd(20, 10, 0, 1024)
    srd(24, 12, WS_G, 8192)
    e("s_sub_u32 s28, s2, 184")
    e("s_lshl_b32 s28, s28, 7")
    e("s_lshl_b32 s35, s31, 4")
    e("s_add_u32 s28, s28, s35")
    e("v_and_b32 v3, 15, v2")
    e("v_lshrrev_b32 v4, 4, v2")
    e("v_lshlrev_b32 v5, 6, v3")
    for j in range(4):
        e(f"buffer_load_dwordx4 {vr(8+4*j,4)}, v5, s[20:23], 0 offen offset:{16*j}")
    e("v_lshl_add_u32 v6, v4, 10, v5")
    e("s_lshl_b32 s35, s28, 10")
    e("s_waitcnt vmcnt(0)")
    for j in range(16):
        e(f"v_lshlrev_b32 v{32+2*j}, 16, v{8+j}")
        e(f"v_and_b32 v{32+2*j+1}, 0xffff0000, v{8+j}")
    for it in range(4):
        for j in range(4):
            e(f"buffer_load_dwordx4 {vr(8+4*j,4)}, v6, s[16:19], s35 offen offset:{16*j}")
        e("v_mov_b32 v24, 0")
        e("s_waitcnt vmcnt(0)")
        for j in range(16):
            e(f"v_lshlrev_b32 v25, 16, v{8+j}")
            e(f"v_and_b32 v26, 0xffff0000, v{8+j}")
            e(f"v_fmac_f32 v24, v25, v{32+2*j}")
            e(f"v_fmac_f32 v24, v26, v{32+2*j+1}")
        for sh in (8, 4, 2, 1):
            e("s_nop 1")
            e(f"v_add_f32_dpp v24, v24, v24 row_ror:{sh} row_mask:0xf bank_mask:0xf")
        e("v_mul_f32 v24, 0xbfb8aa3b, v24")
        e("v_exp_f32 v24, v24")
        e("s_nop 0")
        e("v_add_f32 v24, 1.0, v24")
        e("v_rcp_f32 v24, v24")
        e("v_lshlrev_b32 v25, 2, v4")
        e(f"s_lshl_b32 s38, s28, 2")
        e(f"s_add_u32 s38, s38, {it*16}")
        e("buffer_store_dword v24, v25, s[24:27], s38 offen")
        e("s_add_u32 s35, s35, 4096")
    lab("K1_DONE")
    e("s_endpgm")


def k2():
    lab("k2_attn_kernel")
    e("s_load_dwordx2 s[12:13], s[0:1], 72")
    e("s_cmp_ge_u32 s2, 256")
    e("s_cbranch_scc1 K2_DONE")
    e("v_lshrrev_b32 v1, 6, v0")
    e("v_and_b32 v2, 63, v0")
    e("v_readfirstlane_b32 s31, v1")
    e("s_and_b32 s28, s2, 7")
    e("s_lshl_b32 s28, s28, 2")
    e("s_lshr_b32 s29, s2, 3")
    e("s_and_b32 s29, s29, 3")
    e("s_add_u32 s28, s28, s29")
    e("s_lshr_b32 s29, s2, 5")
    e("s_waitcnt lgkmcnt(0)")
    e("s_lshl_b32 s35, s28, 16")
    e("s_add_u32 s16, s12, s35")
    e("s_addc_u32 s17, s13, 0")
    e(f"s_add_u32 s20, s16, 0x{WS_V:x}")
    e("s_addc_u32 s21, s17, 0")
    e(f"s_add_u32 s16, s16, 0x{WS_K:x}")
    e("s_addc_u32 s17, s17, 0")
    e("s_mov_b32 s18, 0x10000")
    e("s_mov_b32 s19, 0x00020000")
    e("s_mov_b32 s22, 0x10000")
    e("s_mov_b32 s23, 0x00020000")
    srd(24, 12, WS_Q, 2048*1024)
    cm("Q fragment load")
    e("v_and_b32 v3, 31, v2")
    e("v_lshrrev_b32 v4, 5, v2")
    e("s_lshl_b32 s35, s29, 8")
    e("s_lshl_b32 s36, s31, 5")
    e("s_add_u32 s35, s35, s36")
    e("v_add_u32 v3, s35, v3")
    e("v_lshlrev_b32 v5, 10, v3")
    e("v_lshl_add_u32 v5, v4, 4, v5")
    e("s_lshl_b32 s36, s28, 5")
    VQ = 8
    e(f"buffer_load_dwordx4 {vr(VQ,4)}, v5, s[24:27], s36 offen")
    cm("K/V DMA : all chunks up front")
    e("v_lshlrev_b32 v6, 4, v2")
    e("s_lshl_b32 s32, s31, 10")
    for ci in range(8):
        e(f"s_add_u32 m0, s32, {ci*8192}")
        e(f"s_add_u32 s36, s32, {ci*8192}")
        e(f"buffer_load_dwordx4 v6, s[16:19], s36 offen lds")
        e(f"s_add_u32 m0, s32, {65536 + ci*8192}")
        e(f"buffer_load_dwordx4 v6, s[20:23], s36 offen lds")
    cm("const area (ones) at LDS 131072")
    e("v_mov_b32 v12, 0x3f803f80")
    e("v_mov_b32 v13, 0x3f803f80")
    e("v_mov_b32 v14, 0x3f803f80")
    e("v_mov_b32 v15, 0x3f803f80")
    e("v_mov_b32 v7, 0x20000")
    e("ds_write_b128 v7, v[12:15]")
    e("ds_write_b128 v7, v[12:15] offset:512")
    cm("fragment addresses")
    VKA, VVA, VVS = 16, 17, 18
    e(f"v_lshlrev_b32 v{VKA}, 5, v2")
    e(f"v_and_b32 v{VKA}, 0x3e0, v{VKA}")
    e(f"v_lshl_add_u32 v{VKA}, v4, 4, v{VKA}")
    e("v_and_b32 v3, 31, v2")
    e("v_and_b32 v5, 15, v2")
    e("v_lshl_add_u32 v5, v4, 4, v5")
    e("v_lshlrev_b32 v5, 4, v5")
    e("v_add_u32 v5, 0x10000, v5")
    e("v_cmp_gt_u32 vcc, 16, v3")
    e("v_mov_b32 v7, 0x20000")
    e("v_mov_b32 v12, 0x400")
    e(f"v_cndmask_b32 v{VVA}, v7, v5, vcc")
    e(f"v_cndmask_b32 v{VVS}, 0, v12, vcc")
    VTM, VTMP = 19, 20
    VKF = 24
    VVF = 32
    VP = 48
    VS = 56
    VO = 88
    VN = 104
    for r in range(16):
        e(f"v_mov_b32 v{VO+r}, 0")
    e("s_mov_b32 s42, 0")
    e("s_mov_b32 s43, 0x41000000")
    cm("wait chunk 0,1 (+Q)")
    e("s_waitcnt vmcnt(12) lgkmcnt(0)")
    e("s_barrier")
    e(f"ds_read_b128 {vr(VKF,4)}, v{VKA}")
    e(f"ds_read_b128 {vr(VKF+4,4)}, v{VKA} offset:1024")
    e(f"ds_read_b128 {vr(VVF,4)}, v{VVA}")
    e(f"ds_read_b128 {vr(VVF+4,4)}, v{VVA} offset:512")
    e(f"v_add_u32 v{VVA}, v{VVA}, v{VVS}")
    e("s_waitcnt lgkmcnt(3)")
    e(f"v_mfma_f32_32x32x16_bf16 {vr(VS,16)}, {vr(VKF,4)}, {vr(VQ,4)}, 0")
    e("s_nop 15")
    e("s_nop 15")
    cm("init: reference = max of tile 0")
    S = VS
    e(f"v_max3_f32 v{VTM}, v{S}, v{S+1}, v{S+2}")
    for j in range(6):
        e(f"v_max3_f32 v{VTM}, v{VTM}, v{S+3+2*j}, v{S+4+2*j}")
    e(f"v_max_f32 v{VTM}, v{VTM}, v{S+15}")
    e(f"v_mov_b32 v{VTMP}, v{VTM}")
    e("s_nop 1")
    e(f"v_permlane32_swap_b32 v{VTM}, v{VTMP}")
    e(f"v_max_f32 v{VTM}, v{VTM}, v{VTMP}")
    for r in range(16):
        e(f"v_sub_f32 v{S+r}, v{S+r}, v{VTM}")
        e(f"v_sub_f32 v{VN+r}, 0, v{VTM}")
    slow = []
    lab("K2_CHUNK")
    for t in range(8):
        par = t & 1
        S = VS + 16*par
        Sn = VS + 16*(1-par)
        Kn = VKF + 4*(1-par)
        Kf = VKF + 4*par
        Vc = VVF + 8*par
        Vn = VVF + 8*(1-par)
        cm(f"--- tile {t}")
        e(f"ds_read_b128 {vr(Vn,4)}, v{VVA}")
        e(f"ds_read_b128 {vr(Vn+4,4)}, v{VVA} offset:512")
        e(f"v_add_u32 v{VVA}, v{VVA}, v{VVS}")
        e(f"v_max3_f32 v{VTM}, v{S}, v{S+1}, v{S+2}")
        for j in range(6):
            e(f"v_max3_f32 v{VTM}, v{VTM}, v{S+3+2*j}, v{S+4+2*j}")
        e(f"v_max_f32 v{VTM}, v{VTM}, v{S+15}")
        e(f"v_cmp_lt_f32 vcc, 8.0, v{VTM}") if False else e(f"v_cmp_lt_f32 vcc, s43, v{VTM}")
        e(f"s_cbranch_vccnz K2_SLOW{t}")
        lab(f"K2_FAST{t}")
        e(f"s_waitcnt lgkmcnt(2)")
        e(f"v_mfma_f32_32x32x16_bf16 {vr(Sn,16)}, {vr(Kn,4)}, {vr(VQ,4)}, {vr(VN,16)}")
        e(f"ds_read_b128 {vr(Kf,4)}, v{VKA} offset:{(t+2)*1024}")
        for r in range(8):
            e(f"v_exp_f32 v{S+r}, v{S+r}")
        for j in range(4):
            e(f"v_exp_f32 v{S+8+2*j}, v{S+8+2*j}")
            e(f"v_cvt_pk_bf16_f32 v{VP+j}, v{S+2*j}, v{S+2*j+1}")
            e(f"v_exp_f32 v{S+9+2*j}, v{S+9+2*j}")
        e("s_nop 0")
        e(f"v_mfma_f32_32x32x16_bf16 {vr(VO,16)}, {vr(Vc,4)}, {vr(VP,4)}, {vr(VO,16)}")
        for j in range(4):
            e(f"v_cvt_pk_bf16_f32 v{VP+4+j}, v{S+8+2*j}, v{S+8+2*j+1}")
        e("s_nop 1")
        e(f"v_mfma_f32_32x32x16_bf16 {vr(VO,16)}, {vr(Vc+4,4)}, {vr(VP+4,4)}, {vr(VO,16)}")
        slow.append((t,))
    cm("next chunk")
    e(f"v_add_u32 v{VKA}, 0x2000, v{VKA}")
    e("s_add_u32 s42, s42, 1")
    e("s_cmp_eq_u32 s42, 8")
    e("s_cbranch_scc1 K2_EPI")
    cm("wait for the chunk after the next one")
    for c in range(1, 7):
        e(f"s_cmp_eq_u32 s42, {c}")
        e(f"s_cbranch_scc0 K2_W{c}")
        e(f"s_waitcnt vmcnt({12 - 2*c})")
        lab(f"K2_W{c}")
    e("s_barrier")
    e("s_branch K2_CHUNK")
    for (t,) in slow:
        S = VS + 16*(t & 1)
        lab(f"K2_SLOW{t}")
        e(f"v_mov_b32 v{VTMP}, v{VTM}")
        e("s_nop 1")
        e(f"v_permlane32_swap_b32 v{VTM}, v{VTMP}")
        e(f"v_max_f32 v{VTM}, v{VTM}, v{VTMP}")
        e(f"v_max_f32 v{VTM}, 0, v{VTM}")
        e(f"v_sub_f32 v{VTMP}, 0, v{VTM}")
        e(f"v_exp_f32 v{VTMP}, v{VTMP}")
        e("s_nop 7")
        e("s_nop 7")
        for r in range(16):
            e(f"v_sub_f32 v{S+r}, v{S+r}, v{VTM}")
            e(f"v_sub_f32 v{VN+r}, v{VN+r}, v{VTM}")
        for r in range(9):
            e(f"v_mul_f32 v{VO+r}, v{VO+r}, v{VTMP}")
        e("s_nop 1")
        e(f"s_branch K2_FAST{t}")
    lab("K2_EPI")
    e("s_nop 15")
    e("s_nop 15")
    e(f"v_rcp_f32 v{VTM}, v{VO+8}")
    e("s_nop 0")
    for r in range(8):
        e(f"v_mul_f32 v{VO+r}, v{VO+r}, v{VTM}")
    for j in range(4):
        e(f"v_cvt_pk_bf16_f32 v{VP+j}, v{VO+2*j}, v{VO+2*j+1}")
    e("s_nop 1")
    e(f"v_permlane32_swap_b32 v{VP}, v{VP+2}")
    e(f"v_permlane32_swap_b32 v{VP+1}, v{VP+3}")
    srd(24, 12, WS_O, 2048*1024)
    e("v_and_b32 v3, 31, v2")
    e("v_lshrrev_b32 v4, 5, v2")
    e("v_add_u32 v3, s35, v3")
    e("v_lshlrev_b32 v5, 10, v3")
    e("v_lshl_add_u32 v5, v4, 4, v5")
    e("s_lshl_b32 s36, s28, 5")
    e(f"buffer_store_dwordx4 {vr(VP,4)}, v5, s[24:27], s36 offen")
    lab("K2_DONE")
    e("s_endpgm")

def k3():
    lab("k3_out_kernel")
    e("s_load_dwordx2 s[4:5], s[0:1], 16")
    e("s_load_dwordx2 s[6:7], s[0:1], 40")
    e("s_load_dwordx2 s[8:9], s[0:1], 56")
    e("s_load_dwordx2 s[12:13], s[0:1], 72")
    e("s_cmp_ge_u32 s2, 256")
    e("s_cbranch_scc1 K3_DONE")
    e("v_lshrrev_b32 v1, 6, v0")
    e("v_and_b32 v2, 63, v0")
    e("v_readfirstlane_b32 s31, v1")
    e("s_and_b32 s28, s2, 7")
    e("s_lshl_b32 s28, s28, 2")
    e("s_lshr_b32 s29, s2, 6")
    e("s_add_u32 s28, s28, s29")
    e("s_lshr_b32 s29, s2, 3")
    e("s_and_b32 s29, s29, 7")
    e("s_waitcnt lgkmcnt(0)")
    srd(16, 12, WS_O, 2048*1024)
    srd(20, 12, WS_H, H_BYTES)
    srd(24, 4, 0, 512*1024)
    srd(44, 6, 0, 1376*1024)
    cm("DMA lane offsets: A tile rows of 128B, 8 rows per instr")
    e("v_lshrrev_b32 v3, 3, v2")
    e("v_and_b32 v4, 7, v2")
    e("v_lshrrev_b32 v5, 4, v2")
    e("v_xor_b32 v6, v4, v5")
    e("v_lshlrev_b32 v6, 4, v6")
    e("v_lshl_add_u32 v8, v3, 10, v6")
    e("v_xor_b32 v9, 64, v8")
    e(f"s_movk_i32 s35, {HROW}")
    e("v_mul_lo_u32 v7, v3, s35")
    e("v_add_u32 v10, v7, v6")
    e("v_xor_b32 v6, 64, v6")
    e("v_add_u32 v11, v7, v6")
    cm("B tile: rows of 128B (64 cols), 8 rows per instr ; chunk ^= ((row>>1)&1)<<2")
    e("v_lshrrev_b32 v5, 1, v3")
    e("v_and_b32 v5, 1, v5")
    e("v_lshlrev_b32 v5, 2, v5")
    e("v_xor_b32 v5, v5, v4")
    e("v_lshlrev_b32 v5, 4, v5")
    e("v_lshl_add_u32 v12, v3, 10, v5")
    cm("scalar bases")
    e("s_lshl_b32 s32, s31, 11")
    e("s_lshl_b32 s33, s28, 6")
    e("s_lshl_b32 s35, s31, 4")
    e("s_add_u32 s33, s33, s35")
    e("s_lshl_b32 s34, s33, 10")
    e(f"s_mul_i32 s36, s33, {HROW}")
    e("s_lshl_b32 s37, s29, 7")
    e("s_lshl_b32 s35, s31, 14")
    e("s_add_u32 s37, s37, s35")
    cm("fragment addresses")
    e("s_lshr_b32 s38, s31, 1")
    e("s_and_b32 s39, s31, 1")
    e("v_and_b32 v3, 31, v2")
    e("v_lshrrev_b32 v4, 5, v2")
    e("v_lshrrev_b32 v5, 1, v3")
    e("v_and_b32 v5, 7, v5")
    e("s_lshl_b32 s35, s38, 12")
    e("v_lshlrev_b32 v6, 7, v3")
    e("v_add_u32 v6, s35, v6")
    for kk in range(4):
        e(f"v_add_u32 v{13+kk}, {2*kk}, v4")
        e(f"v_xor_b32 v{13+kk}, v{13+kk}, v5")
        e(f"v_lshl_add_u32 v{13+kk}, v{13+kk}, 4, v6")
    e("v_lshrrev_b32 v3, 4, v2")
    e("v_and_b32 v4, 1, v3")
    e("v_lshrrev_b32 v3, 1, v3")
    e("v_and_b32 v5, 15, v2")
    e("v_lshrrev_b32 v6, 2, v5")
    e("v_and_b32 v5, 3, v5")
    e("v_lshl_add_u32 v7, v3, 3, v6")
    e("v_lshlrev_b32 v7, 7, v7")
    e("v_lshl_add_u32 v7, v4, 5, v7")
    e("v_lshl_add_u32 v7, v5, 3, v7")
    e("v_lshrrev_b32 v6, 1, v6")
    e("v_xor_b32 v6, s39, v6")
    e("v_lshl_add_u32 v17, v6, 6, v7")
    e("v_add_u32 v17, 0x2000, v17")
    for kk in range(4):
        e(f"v_add_u32 v{18+kk}, 0x10000, v{13+kk}")
    e("v_add_u32 v22, 0x10000, v17")
    ACC = 64
    for r in range(32):
        e(f"v_mov_b32 v{ACC+r}, 0")
    NST = 30
    NBUF = 8
    def dma(s):
        buf = s % NBUF
        for i in range(2):
            e(f"s_add_u32 m0, s32, {buf*16384 + i*1024}")
            if s < 8:
                e(f"s_add_u32 s35, s34, {i*8192 + s*128}")
                e(f"buffer_load_dwordx4 v{8+i}, s[16:19], s35 offen lds")
            else:
                e(f"s_add_u32 s35, s36, {i*8*HROW + (s-8)*128}")
                e(f"buffer_load_dwordx4 v{10+i}, s[20:23], s35 offen lds")
        for i in range(2):
            e(f"s_add_u32 m0, s32, {buf*16384 + 8192 + i*1024}")
            if s < 8:
                e(f"s_add_u32 s35, s37, {(s*64 + i*8)*1024}")
                e(f"buffer_load_dwordx4 v12, s[24:27], s35 offen lds")
            else:
                e(f"s_add_u32 s35, s37, {((s-8)*64 + i*8)*1024}")
                e(f"buffer_load_dwordx4 v12, s[44:47], s35 offen lds")
    for p in range(NBUF - 1):
        dma(p)
    def k3reads(s):
        buf = s % NBUF
        hb = buf >= 4
        bo = (buf % 4) * 16384
        base = 32 if (s & 1) == 0 else 96
        for kk in range(4):
            fs = base + 8*kk
            e(f"ds_read_b128 {vr(fs,4)}, v{(18 if hb else 13)+kk} offset:{bo}")
            e(f"ds_read_b64_tr_b16 {vr(fs+4,2)}, v{22 if hb else 17} offset:{bo + kk*2048}")
            e(f"ds_read_b64_tr_b16 {vr(fs+6,2)}, v{22 if hb else 17} offset:{bo + kk*2048 + 512}")
    e(f"s_waitcnt vmcnt({4*(NBUF-2)})")
    e("s_barrier")
    k3reads(0)
    for s in range(NST):
        if s + 1 < NST:
            e(f"s_waitcnt vmcnt({4*max(min(NBUF - 3, NST - 2 - s),0)}) lgkmcnt(0)")
            e("s_barrier")
            if s + NBUF - 1 < NST:
                dma(s + NBUF - 1)
            k3reads(s + 1)
        else:
            e("s_waitcnt lgkmcnt(0)")
        acc = ACC if s < 8 else ACC + 16
        base = 32 if (s & 1) == 0 else 96
        for kk in range(4):
            fs = base + 8*kk
            e(f"v_mfma_f32_32x32x16_bf16 {vr(acc,16)}, {vr(fs+4,4)}, {vr(fs,4)}, {vr(acc,16)}")
    e("s_nop 15")
    e("s_nop 15")
    cm("epilogue")
    srd(16, 12, WS_G, 8192)
    srd(20, 8, 0, 2048*1024)
    e("v_and_b32 v3, 31, v2")
    e("v_lshrrev_b32 v4, 5, v2")
    e("s_lshl_b32 s35, s28, 6")
    e("s_lshl_b32 s36, s38, 5")
    e("s_add_u32 s35, s35, s36")
    e("v_add_u32 v3, s35, v3")
    e("v_lshlrev_b32 v5, 2, v3")
    e("buffer_load_dword v6, v5, s[16:19], 0 offen")
    e("v_lshlrev_b32 v5, 10, v3")
    e("v_lshl_add_u32 v5, v4, 4, v5")
    e("s_lshl_b32 s35, s29, 7")
    e("s_lshl_b32 s36, s39, 6")
    e("s_add_u32 s35, s35, s36")
    e("s_waitcnt vmcnt(0)")
    e("v_sub_f32 v7, 1.0, v6")
    for r in range(16):
        e(f"v_mul_f32 v{ACC+16+r}, v{ACC+16+r}, v7")
        e(f"v_fma_f32 v{ACC+r}, v{ACC+r}, v6, v{ACC+16+r}")
    for j in range(8):
        e(f"v_cvt_pk_bf16_f32 v{32+j}, v{ACC+2*j}, v{ACC+2*j+1}")
    e("s_nop 1")
    for sg in range(2):
        e(f"v_permlane32_swap_b32 v{32+4*sg}, v{32+4*sg+2}")
        e(f"v_permlane32_swap_b32 v{32+4*sg+1}, v{32+4*sg+3}")
    for sg in range(2):
        e(f"buffer_store_dwordx4 {vr(32+4*sg,4)}, v5, s[20:23], s35 offen offset:{sg*32}")
    lab("K3_DONE")
    e("s_endpgm")

HEADER = open("gated_mix__softmax_full_mha__dense_activation_relu__prompt.s.ref").read().split("\n")
hdr = []
for ln in HEADER:
    if ln.startswith("; @launch"):
        break
    hdr.append(ln)
out = hdr[:]
out.append("; @launch kernel=k1_gemm_kernel grid=(200,1,1) block=(512,1,1) lds=98304")
out.append("; @launch kernel=k2_attn_kernel grid=(256,1,1) block=(512,1,1) lds=132096")
out.append("; @launch kernel=k3_out_kernel grid=(256,1,1) block=(256,1,1) lds=131072")
out.append('.amdgcn_target "amdgcn-amd-amdhsa--gfx950"')
out.append(".text")
kernels = [("k1_gemm_kernel", k1, 160), ("k2_attn_kernel", k2, 120), ("k3_out_kernel", k3, 128)]
for name, fn, nv in kernels:
    out.append(f".globl {name}")
    out.append(".p2align 8")
    out.append(f".type {name},@function")
    L.clear()
    fn()
    out.extend(L)
out.append('.section .rodata,"a"')
for name, fn, nv in kernels:
    out.append(".p2align 6")
    out.append(f".amdhsa_kernel {name}")
    out.append(f"  .amdhsa_next_free_vgpr {nv}")
    out.append("  .amdhsa_next_free_sgpr 102")
    out.append(f"  .amdhsa_accum_offset {nv}")
    out.append("  .amdhsa_group_segment_fixed_size 0")
    out.append("  .amdhsa_kernarg_size 80")
    out.append("  .amdhsa_user_sgpr_count 2")
    out.append("  .amdhsa_user_sgpr_kernarg_segment_ptr 1")
    out.append("  .amdhsa_system_sgpr_workgroup_id_x 1")
    out.append(".end_amdhsa_kernel")
open(sys.argv[1] if len(sys.argv) > 1 else "gated_mix__softmax_full_mha__dense_activation_relu__prompt.s", "w").write("\n".join(out) + "\n")
```
